```python
import torch

def _softmax(x, axis=-1):
    return torch.softmax(x, dim=axis)
def _gelu(x):
    return torch.nn.functional.gelu(x, approximate="tanh")
def _silu(x):
    return torch.nn.functional.silu(x)
def _sigmoid(x):
    return torch.sigmoid(x)
def _layernorm(x, axis=-1, eps=1e-5):
    m = x.mean(dim=axis, keepdim=True)
    v = x.var(dim=axis, keepdim=True, unbiased=False)
    return (x - m) / torch.sqrt(v + eps)
def _scatter_add(tgt, idx, src, axis=0):
    return tgt.clone().index_add_(axis, idx, src)
def _segment_sum(src, seg, n):
    out = torch.zeros((n,) + src.shape[1:], dtype=src.dtype)
    return out.index_add_(0, seg, src)
def _pad(x, pw):
    flat = tuple(v for pair in reversed(pw) for v in pair)
    return torch.nn.functional.pad(x, flat)

kernel_name = 'standalone__batchnorm__sampling'

def setup_inputs():

    _w = (lambda a: (lambda t: t.to(torch.bfloat16) if t.is_floating_point() else t)(torch.as_tensor(a)))
    B, S, C = 1024, 4, 512
    K = 3
    return {
        "x": _w((lambda *s: torch.randn(*s, dtype=torch.bfloat16) * 0.05)(B, S, C)),
        "w": _w((lambda *s: torch.randn(*s, dtype=torch.bfloat16) * 0.05)(K, C, C) * (1.0 / (K * C) ** 0.5)),
        "mean": _w((lambda *s: torch.randn(*s, dtype=torch.bfloat16) * 0.05)(C) * 0.1),
        "var": _w(torch.abs((lambda *s: torch.randn(*s, dtype=torch.bfloat16) * 0.05)(C)) + 0.5),
        "g": _w((lambda *s: torch.randn(*s, dtype=torch.bfloat16) * 0.05)(C) + 1.0),
        "b": _w((lambda *s: torch.randn(*s, dtype=torch.bfloat16) * 0.05)(C) * 0.1),
    }

def reference(x, w, mean, var, g, b):
    K = 3
    P = K // 2
    S = x.shape[1]
    xp = _pad(x, ((0, 0), (P, P), (0, 0)))
    y = sum(torch.einsum('bsc,cd->bsd', xp[:, k:k + S, :], w[k]) for k in range(K))
    inv_std = 1.0 / torch.sqrt(var + 1e-5)
    y = (y - mean) * (g * inv_std) + b
    return _silu(y)
```

```python
import sys

HEADER = """; Kernarg layout for this problem (72 bytes, ptrs only, base s[0:1]):
"""

NAME = "standalone__batchnorm__sampling_kernel"
SLOT = 40960


def gen(stamps=False):
    o = []
    e = o.append
    e(HEADER.rstrip())
    e("; @launch grid=(256,1,1) block=(512,1,1) lds=163840")
    e('.amdgcn_target "amdgcn-amd-amdhsa--gfx950"')
    e(".text")
    e(f".globl {NAME}")
    e(".p2align 8")
    e(f".type {NAME},@function")
    e(f"{NAME}:")
    if stamps:
        e("s_memrealtime s[60:61]")
        e("s_memtime s[62:63]")
    e("s_load_dwordx4 s[4:7], s[0:1], 0")
    e("s_cmp_ge_u32 s2, 256")
    e("s_cbranch_scc1 L_end")
    e("s_and_b32 s20, s2, 6")
    e("s_lshl_b32 s20, s20, 2")
    e("s_lshr_b32 s21, s2, 5")
    e("s_add_u32 s20, s20, s21")
    e("s_and_b32 s21, s2, 1")
    e("s_lshl_b32 s21, s21, 2")
    e("s_bfe_u32 s22, s2, 0x20003")
    e("s_add_u32 s21, s21, s22")
    e("s_lshl_b32 s20, s20, 17")
    e("s_lshl_b32 s21, s21, 7")
    e("v_readfirstlane_b32 s23, v0")
    e("v_and_b32 v1, 63, v0")
    e("s_lshr_b32 s23, s23, 6")
    e("s_cmp_lt_u32 s23, 4")
    e("s_cbranch_scc1 L_consumer")
    e("s_sub_u32 s23, s23, 4")
    e("v_lshrrev_b32 v2, 3, v1")
    e("v_and_b32 v3, 7, v1")
    e("v_lshrrev_b32 v4, 4, v1")
    e("v_xor_b32 v5, v3, v4")
    e("v_lshlrev_b32 v5, 4, v5")
    e("v_lshl_add_u32 v5, v2, 12, v5")
    e("s_lshl_b32 s24, s23, 10")
    e("v_add_u32 v10, s24, v5")
    e("v_xor_b32 v11, 64, v10")
    e(f"v_add_u32 v11, {32768-1024}, v11")
    e(f"v_add_u32 v12, {2*(32768-1024)}, v10")
    e(f"v_add_u32 v13, {2*(32768-1024)}, v11")
    e("v_and_b32 v4, 1, v4")
    e("v_lshlrev_b32 v4, 2, v4")
    e("v_xor_b32 v4, v4, v3")
    e("v_lshlrev_b32 v4, 4, v4")
    e("v_lshl_add_u32 v4, v2, 10, v4")
    e("s_lshl_b32 s24, s23, 14")
    e("v_add_u32 v14, s24, v4")
    e(f"v_add_u32 v15, {8192-1024}, v14")
    e("s_lshl_b32 s25, s23, 12")
    e("s_lshl_b32 s26, s23, 11")
    e("s_add_u32 s26, s26, 16384")
    e("s_mov_b32 s27, 0")
    e("s_mov_b32 s28, 0")
    e("s_mov_b32 s10, 131072")
    e("s_mov_b32 s11, 0x20000")
    e("s_mov_b32 s15, 0x20000")
    e("s_sub_u32 s14, 1572864, s21")
    e("s_mov_b32 s31, 0")
    e("s_waitcnt lgkmcnt(0)")
    e("s_add_u32 s8, s4, s20")
    e("s_addc_u32 s9, s5, 0")
    e("s_add_u32 s12, s6, s21")
    e("s_addc_u32 s13, s7, 0")

    def issue_stage():
        e("s_mov_b32 m0, s25")
        e("s_add_u32 s29, s28, 524288")
        e("buffer_load_dwordx4 v10, s[8:11], s27 offen lds")
        e("buffer_load_dwordx4 v11, s[8:11], s27 offen offset:1024 lds")
        e("buffer_load_dwordx4 v12, s[8:11], s27 offen offset:2048 lds")
        e("buffer_load_dwordx4 v13, s[8:11], s27 offen offset:3072 lds")
        e("s_mov_b32 m0, s26")
        e("s_add_u32 s30, s28, 1048576")
        e("buffer_load_dwordx4 v14, s[12:15], s28 offen lds")
        e("buffer_load_dwordx4 v15, s[12:15], s28 offen offset:1024 lds")
        e("s_add_u32 m0, s26, 8192")
        e("s_add_u32 s27, s27, 128")
        e("buffer_load_dwordx4 v14, s[12:15], s29 offen lds")
        e("buffer_load_dwordx4 v15, s[12:15], s29 offen offset:1024 lds")
        e("s_add_u32 m0, s26, 16384")
        e("s_add_u32 s28, s28, 65536")
        e("buffer_load_dwordx4 v14, s[12:15], s30 offen lds")
        e("buffer_load_dwordx4 v15, s[12:15], s30 offen offset:1024 lds")
        e(f"s_add_u32 s25, s25, {SLOT}")
        e(f"s_add_u32 s26, s26, {SLOT}")

    e("L_lpro:")
    issue_stage()
    e("s_add_u32 s31, s31, 1")
    e("s_cmp_lt_u32 s31, 4")
    e("s_cbranch_scc1 L_lpro")
    e(f"s_sub_u32 s25, s25, {4*SLOT}")
    e(f"s_sub_u32 s26, s26, {4*SLOT}")
    e("s_waitcnt vmcnt(30)")
    if stamps:
        e("s_memtime s[64:65]")
    e("s_barrier")
    e("L_lmain:")
    e("s_waitcnt vmcnt(20)")
    e("s_barrier")
    issue_stage()
    e("s_add_u32 s31, s31, 1")
    e("s_cmp_lt_u32 s31, 8")
    e("s_cbranch_scc1 L_lmain")
    e("s_waitcnt vmcnt(20)")
    e("s_barrier")
    e("s_waitcnt vmcnt(10)")
    e("s_barrier")
    e("s_waitcnt vmcnt(0)")
    if stamps:
        e("s_memtime s[66:67]")
    e("s_barrier")
    if stamps:
        e("s_cmp_lg_u32 s23, 0")
        e("s_cbranch_scc1 L_end")
        e("s_load_dwordx2 s[40:41], s[0:1], 64")
        e("s_waitcnt lgkmcnt(0)")
        e("s_lshl_b32 s42, s2, 7")
        e("s_add_u32 s40, s40, s42")
        e("s_addc_u32 s41, s41, 0")
        e("v_mov_b32 v2, 0")
        for k, r in enumerate([62, 63, 64, 65, 66, 67]):
            e(f"v_mov_b32 v3, s{r}")
            e(f"global_store_dword v2, v3, s[40:41] offset:{64+4*k}")
    e("s_endpgm")

    e("L_consumer:")
    e("s_load_dwordx8 s[32:39], s[0:1], 16")
    e("s_load_dwordx2 s[40:41], s[0:1], 48")
    e("s_and_b32 s24, s23, 1")
    e("s_lshr_b32 s25, s23, 1")
    e("v_and_b32 v2, 31, v1")
    e("v_lshrrev_b32 v3, 5, v1")
    e("v_bfe_u32 v20, v1, 1, 3")
    e("v_xor_b32 v20, v20, v3")
    e("v_lshlrev_b32 v20, 4, v20")
    e("v_lshl_add_u32 v20, v2, 7, v20")
    e("s_mul_i32 s26, s25, 12288")
    e("s_lshl_b32 s27, s25, 12")
    e("s_add_u32 s28, s27, 4096")
    e("s_sub_u32 s29, 8192, s27")
    for n, s in enumerate(["s26", "s28", "s29"]):
        e(f"v_add_u32 v{4+n*4}, {s}, v20")
        for u in range(1, 4):
            e(f"v_xor_b32 v{4+n*4+u}, {u*32}, v{4+n*4}")
    e("v_bfe_u32 v20, v1, 2, 2")
    e("v_lshl_add_u32 v21, v3, 3, v20")
    e("v_lshlrev_b32 v21, 7, v21")
    e("v_lshrrev_b32 v20, 1, v20")
    e("v_xor_b32 v20, s24, v20")
    e("v_lshl_add_u32 v21, v20, 6, v21")
    e("v_and_b32 v20, 1, v1")
    e("v_lshl_add_u32 v21, v20, 5, v21")
    e("v_bfe_u32 v20, v1, 4, 1")
    e("v_lshl_add_u32 v21, v20, 4, v21")
    e("v_bfe_u32 v20, v1, 1, 1")
    e("v_lshl_add_u32 v21, v20, 3, v21")
    e("s_lshl_b32 s27, s25, 14")
    e("s_add_u32 s26, s27, 16384")
    e("s_sub_u32 s28, 32768, s27")
    e("v_add_u32 v16, s26, v21")
    e("v_add_u32 v17, 24576, v21")
    e("v_add_u32 v18, s28, v21")
    for r in range(32, 64):
        e(f"v_mov_b32 v{r}, 0")
    for r in range(88, 112):
        e(f"v_mov_b32 v{r}, 0")
    e("v_lshlrev_b32 v20, 1, v1")
    e("v_add_u32 v20, s21, v20")
    e("s_waitcnt lgkmcnt(0)")
    e("global_load_short_d16_hi v22, v20, s[32:33]")
    e("global_load_short_d16_hi v23, v20, s[34:35]")
    e("global_load_short_d16_hi v24, v20, s[36:37]")
    e("global_load_short_d16_hi v25, v20, s[38:39]")
    e("s_add_u32 s20, s20, s21")
    e("s_add_u32 s44, s40, s20")
    e("s_addc_u32 s45, s41, 0")
    e("s_sub_u32 s46, 4194304, s20")
    e("s_mov_b32 s47, 0x20000")
    e("v_lshlrev_b32 v19, 12, v2")
    e("v_lshl_add_u32 v19, v3, 5, v19")
    e("s_lshl_b32 s26, s24, 6")
    e("v_add_u32 v19, s26, v19")
    e("s_mul_i32 s48, s25, 3072")
    e("s_lshl_b32 s49, s25, 10")
    e("s_add_u32 s49, s49, 1024")
    e("s_lshl_b32 s26, s24, 7")
    e("v_lshlrev_b32 v21, 6, v3")
    e("v_add_u32 v21, s26, v21")
    e("s_mov_b32 s50, 0xffff0000")
    e("s_waitcnt vmcnt(0)")
    for r in (22, 23, 24, 25):
        e(f"v_and_b32 v{r}, s50, v{r}")
    e("v_add_f32 v23, 0x3727c5ac, v23")
    e("v_cvt_pk_bf16_f32 v23, v23, v23")
    e("v_and_b32 v23, s50, v23")
    e("v_sqrt_f32 v23, v23")
    e("s_nop 0")
    e("v_cvt_pk_bf16_f32 v23, v23, v23")
    e("v_and_b32 v23, s50, v23")
    e("v_rcp_f32 v23, v23")
    e("s_nop 0")
    e("v_cvt_pk_bf16_f32 v23, v23, v23")
    e("v_and_b32 v23, s50, v23")
    e("v_mul_f32 v23, v24, v23")
    e("v_cvt_pk_bf16_f32 v23, v23, v23")
    e("v_and_b32 v23, s50, v23")
    e("v_fma_f32 v25, -v22, v23, v25")
    for n in range(16):
        e(f"ds_bpermute_b32 v{112+n}, v21, v23 offset:{4*n}")
    e("s_waitcnt lgkmcnt(8)")
    for n in range(16):
        e(f"ds_bpermute_b32 v{128+n}, v21, v25 offset:{4*n}")
        if n == 6:
            e("s_waitcnt lgkmcnt(7)")
    e("s_mov_b32 s31, 0")
    e(f"s_mov_b32 s51, {SLOT}")

    ACC0, ACC1 = "v[32:47]", "v[48:63]"

    def A(st, n):
        b = 64 + st * 24 + n * 4
        return b

    def B(st, n):
        b = 76 + st * 24 + n * 4
        return b

    def seg(u_read, st_read, st_mma, bump):
        rd = []
        def rb(n):
            b = B(st_read, n)
            return f"ds_read_b128 v[{b}:{b+3}], v{4+n*4+u_read}"
        def ra(n, ee):
            b = A(st_read, n) + 2 * ee
            return f"ds_read_b64_tr_b16 v[{b}:{b+1}], v{16+n} offset:{u_read*2048+ee*512}"
        rd = [rb(0), ra(0, 0), ra(0, 1), ra(1, 0), ra(1, 1), rb(1), ra(2, 0), ra(2, 1), rb(2)]
        def mm(acc, a, b):
            a = A(st_mma, a); b = B(st_mma, b)
            return f"v_mfma_f32_32x32x16_bf16 {acc}, v[{a}:{a+3}], v[{b}:{b+3}], {acc}"
        ms = [mm(ACC1, 0, 0), mm(ACC0, 1, 0), mm(ACC1, 1, 1), mm(ACC0, 2, 1), mm(ACC1, 2, 2)]
        e(ms[0]); e(rd[0]); e(rd[1]); e(rd[2])
        e(ms[1]); e(rd[3]); e(rd[4]); e(rd[5])
        e(ms[2]); e(rd[6]); e(rd[7]); e(rd[8])
        e(ms[3])
        for n in range(3):
            e(f"v_add_u32 v{4+n*4+u_read}, s30, v{4+n*4+u_read}")
        if bump:
            for n in range(3):
                e(f"v_add_u32 v{16+n}, s30, v{16+n}")
        e(ms[4])

    e("L_cmain:")
    e("s_and_b32 s29, s31, 3")
    e("s_cmp_eq_u32 s29, 3")
    e(f"s_cselect_b32 s30, {(-3*SLOT) & 0xffffffff}, s51")
    e("s_waitcnt lgkmcnt(0)")
    e("s_barrier")
    seg(0, 0, 1, False)
    e("s_waitcnt lgkmcnt(0)")
    seg(1, 1, 0, False)
    e("s_waitcnt lgkmcnt(0)")
    seg(2, 0, 1, False)
    e("s_waitcnt lgkmcnt(0)")
    seg(3, 1, 0, True)
    e("s_add_u32 s31, s31, 1")
    e("s_cmp_lt_u32 s31, 8")
    e("s_cbranch_scc1 L_cmain")
    e("s_waitcnt lgkmcnt(0)")
    st = 1
    def mm(acc, a, b):
        a = A(st, a); b = B(st, b)
        return f"v_mfma_f32_32x32x16_bf16 {acc}, v[{a}:{a+3}], v[{b}:{b+3}], {acc}"
    e(mm(ACC0, 1, 0)); e(mm(ACC0, 2, 1)); e(mm(ACC1, 0, 0)); e(mm(ACC1, 1, 1)); e(mm(ACC1, 2, 2))
    if stamps:
        e("s_memtime s[64:65]")
    e("s_mov_b32 s52, 0xbfb8aa3b")
    e("s_mov_b32 s53, 0xbfb8aa3b")
    e("s_mov_b32 s54, 1.0")
    e("s_mov_b32 s55, 1.0")
    e("s_nop 7")

    def epi(acc, soff):
        T = 64
        for p in range(8):
            a = acc + 2 * p
            e(f"v_pk_fma_f32 v[{a}:{a+1}], v[{a}:{a+1}], v[{112+2*p}:{113+2*p}], v[{128+2*p}:{129+2*p}]")
        for p in range(8):
            a = acc + 2 * p
            e(f"v_pk_mul_f32 v[{T+2*p}:{T+2*p+1}], v[{a}:{a+1}], s[52:53]")
        for n in range(16):
            e(f"v_exp_f32 v{T+n}, v{T+n}")
        for p in range(8):
            e(f"v_pk_add_f32 v[{T+2*p}:{T+2*p+1}], v[{T+2*p}:{T+2*p+1}], s[54:55]")
        for n in range(16):
            e(f"v_rcp_f32 v{T+n}, v{T+n}")
        for p in range(8):
            a = acc + 2 * p
            e(f"v_pk_mul_f32 v[{a}:{a+1}], v[{a}:{a+1}], v[{T+2*p}:{T+2*p+1}]")
        for p in range(8):
            a = acc + 2 * p
            e(f"v_cvt_pk_bf16_f32 v{acc+p}, v{a}, v{a+1}")
        e(f"buffer_store_dwordx4 v[{acc}:{acc+3}], v19, s[44:47], {soff} offen")
        e(f"buffer_store_dwordx4 v[{acc+4}:{acc+7}], v19, s[44:47], {soff} offen offset:16")

    epi(32, "s48")
    epi(48, "s49")
    if stamps:
        e("s_memtime s[66:67]")
        e("s_waitcnt vmcnt(0)")
        e("s_memtime s[68:69]")
        e("s_memrealtime s[70:71]")
        e("s_cmp_lg_u32 s23, 0")
        e("s_cbranch_scc1 L_end")
        e("s_load_dwordx2 s[40:41], s[0:1], 64")
        e("s_getreg_b32 s72, hwreg(HW_REG_XCC_ID)")
        e("s_waitcnt lgkmcnt(0)")
        e("s_lshl_b32 s42, s2, 7")
        e("s_add_u32 s40, s40, s42")
        e("s_addc_u32 s41, s41, 0")
        e("v_mov_b32 v2, 0")
        for k, r in enumerate([60, 61, 62, 63, 64, 65, 66, 67, 68, 69, 70, 71, 72]):
            e(f"v_mov_b32 v3, s{r}")
            e(f"global_store_dword v2, v3, s[40:41] offset:{4*k}")
    e("L_end:")
    e("s_endpgm")
    e('.section .rodata,"a"')
    e(".p2align 6")
    e(f".amdhsa_kernel {NAME}")
    e("  .amdhsa_next_free_vgpr 144")
    e("  .amdhsa_next_free_sgpr 80")
    e("  .amdhsa_accum_offset 144")
    e("  .amdhsa_group_segment_fixed_size 0")
    e("  .amdhsa_kernarg_size 72")
    e("  .amdhsa_user_sgpr_count 2")
    e("  .amdhsa_user_sgpr_kernarg_segment_ptr 1")
    e("  .amdhsa_system_sgpr_workgroup_id_x 1")
    e(".end_amdhsa_kernel")
    return "\n".join(x if (x.endswith(":") or x.startswith(".") or x.startswith(";") or x.startswith(" ")) else "    " + x for x in o) + "\n"


if __name__ == "__main__":
    stamps = "stamps" in sys.argv[2:]
    open(sys.argv[1], "w").write(gen(stamps))
```
